```python
import torch

def _softmax(x, axis=-1):
    return torch.softmax(x, dim=axis)

def _gelu(x):
    return torch.nn.functional.gelu(x, approximate='tanh')

def _silu(x):
    return torch.nn.functional.silu(x)

def _sigmoid(x):
    return torch.sigmoid(x)

def _layernorm(x, axis=-1, eps=1e-05):
    m = x.mean(dim=axis, keepdim=True)
    v = x.var(dim=axis, keepdim=True, unbiased=False)
    return (x - m) / torch.sqrt(v + eps)

def _scatter_add(tgt, idx, src, axis=0):
    return tgt.clone().index_add_(axis, idx, src)

def _segment_sum(src, seg, n):
    out = torch.zeros((n,) + src.shape[1:], dtype=src.dtype)
    return out.index_add_(0, seg, src)

def _pad(x, pw):
    flat = tuple((v for pair in reversed(pw) for v in pair))
    return torch.nn.functional.pad(x, flat)
kernel_name = 'adaLN_cond__gqa_block_cached__glu_gated_geglu__decode'

def setup_inputs():

    _w = lambda a: (lambda t: t.to(torch.bfloat16) if t.is_floating_point() else t)(torch.as_tensor(a))

    def _A_setup():
        B, Sq, D = (8, 1, 576)
        Hq, Hkv, Sk, Dh = (32, 16, 8192, 128)
        assert Hq % Hkv == 0, (Hq, Hkv)
        return {'x': _w((lambda *s: torch.randn(*s, dtype=torch.bfloat16) * 0.1)(B, Sq, D)), 'k_cache': _w((lambda *s: torch.randn(*s, dtype=torch.bfloat16) * 0.8)(B, Hkv, Sk, Dh)), 'v_cache': _w((lambda *s: torch.randn(*s, dtype=torch.bfloat16) * 3.2)(B, Hkv, Sk, Dh)), 'wq': _w((lambda *s: torch.randn(*s, dtype=torch.bfloat16) * 0.8)(D, Hq * Dh) * D ** (-0.5)), 'wo': _w((lambda *s: torch.randn(*s, dtype=torch.bfloat16) * 3.2)(Hq * Dh, D) * (Hq * Dh) ** (-0.5))}
    _A_in = _A_setup()

    def _B_setup():
        B, S, Dm, Df = (8, 1, 576, 4608)
        return {'x': _w((lambda *s: torch.randn(*s, dtype=torch.bfloat16) * 0.1)(B, S, Dm)), 'w_gate': _w((lambda *s: torch.randn(*s, dtype=torch.bfloat16) * 3.2)(Dm, Df) * Dm ** (-0.5)), 'w_up': _w((lambda *s: torch.randn(*s, dtype=torch.bfloat16) * 3.2)(Dm, Df) * Dm ** (-0.5)), 'w_down': _w((lambda *s: torch.randn(*s, dtype=torch.bfloat16) * 3.2)(Df, Dm) * Df ** (-0.5))}
    _B_in = _B_setup()
    return {'A_x': _A_in['x'], 'A_k_cache': _A_in['k_cache'], 'A_v_cache': _A_in['v_cache'], 'A_wq': _A_in['wq'], 'A_wo': _A_in['wo'], 'B_x': _B_in['x'], 'B_w_gate': _B_in['w_gate'], 'B_w_up': _B_in['w_up'], 'B_w_down': _B_in['w_down'], 'c': _w((lambda *s: torch.randn(*s, dtype=torch.bfloat16) * 0.4)(8, 576) * 8.0), 'w_mod': _w((lambda *s: torch.randn(*s, dtype=torch.bfloat16) * 0.4)(576, 6 * 576) * 576 ** (-0.5) * 8.0)}

def reference(A_x, A_k_cache, A_v_cache, A_wq, A_wo, B_x, B_w_gate, B_w_up, B_w_down, c, w_mod):

    def _A_ref(x, k_cache, v_cache, wq, wo):
        B, Sq, D = x.shape
        Hq, Dh = (32, 128)
        Hkv = k_cache.shape[1]
        rep = Hq // Hkv
        q = (lambda x, *d: x.permute(*d))((x @ wq).reshape(B, Sq, Hq, Dh), 0, 2, 1, 3)
        k = (lambda x, n, axis: torch.repeat_interleave(x, n, dim=axis))(k_cache, rep, axis=1)
        v = (lambda x, n, axis: torch.repeat_interleave(x, n, dim=axis))(v_cache, rep, axis=1)
        scores = torch.einsum('bhqd,bhkd->bhqk', q, k) * Dh ** (-0.5)
        p = _softmax(scores, axis=-1)
        o = torch.einsum('bhqk,bhkd->bhqd', p, v)
        return (lambda x, *d: x.permute(*d))(o, 0, 2, 1, 3).reshape(B, Sq, Hq * Dh) @ wo

    def _B_ref(x, w_gate, w_up, w_down):
        g = torch.einsum('bsd,df->bsf', x, w_gate)
        u = torch.einsum('bsd,df->bsf', x, w_up)
        h = _gelu(g) * u
        return torch.einsum('bsf,fd->bsd', h, w_down)
    x = A_x
    mod = (_silu(c) @ w_mod).reshape(c.shape[0], 6, 1, -1)
    sa, ca, ga, sb, cb, gb = (mod[:, 0].clone(), mod[:, 1].clone(), mod[:, 2].clone(), mod[:, 3].clone(), mod[:, 4].clone(), mod[:, 5].clone())
    h = _layernorm(x, axis=-1) * (1 + ca) + sa
    x = x + ga * _A_ref(h, A_k_cache, A_v_cache, A_wq, A_wo)
    h = _layernorm(x, axis=-1) * (1 + cb) + sb
    x = x + gb * _B_ref(h, B_w_gate, B_w_up, B_w_down)
    return x
```

```python
KN = 'adaLN_cond__gqa_block_cached__glu_gated_geglu__decode'
class Asm:
    def __init__(self):
        self.L = []
        self.n = 0
    def __call__(self, s):
        for line in s.split('\n'):
            line = line.strip()
            if not line: continue
            self.L.append(line if line.endswith(':') or line.startswith('.') or line.startswith(';') else '  ' + line)
    def lab(self, p='L'):
        self.n += 1
        return f'{p}_{self.n}'
    def text(self):
        return '\n'.join(self.L) + '\n'
    def header(self, launches, name=None):
        for l in launches: self(l)
        self('.amdgcn_target "amdgcn-amd-amdhsa--gfx950"\n.text')
    def kstart(self, name):
        self(f'.globl {name}\n.p2align 8\n.type {name},@function\n{name}:')
    def kdesc(self, name, nv, ns, acc=None):
        if acc is None: acc = (nv + 3) // 4 * 4
        self(f'.section .rodata,"a"\n.p2align 6\n.amdhsa_kernel {name}')
        for l in [f'.amdhsa_next_free_vgpr {nv}', f'.amdhsa_next_free_sgpr {ns}', f'.amdhsa_accum_offset {acc}',
                  '.amdhsa_group_segment_fixed_size 0', '.amdhsa_kernarg_size 112', '.amdhsa_user_sgpr_count 2',
                  '.amdhsa_user_sgpr_kernarg_segment_ptr 1', '.amdhsa_system_sgpr_workgroup_id_x 1',
                  '.amdhsa_float_denorm_mode_32 3', '.amdhsa_float_denorm_mode_16_64 3']:
            self.L.append('  ' + l)
        self('.end_amdhsa_kernel')
```

```python
import sys, os
sys.path.insert(0, os.path.dirname(os.path.abspath(__file__)))
from asmlib import *

Q_OFF = 0; MOD_OFF = 65536; H_OFF = 102400; A_SIZE = 131072
OP_OFF = 131072; Y_OFF = 294912; H2_OFF = 442368; X2_OFF = 516096; HH_OFF = 525312; DP_OFF = 599040
WS_SIZE = 131072 + 24 * 4 * 7168
assert DP_OFF + 147456 <= WS_SIZE
NS = 9
RING = NS * 16384
L_LANDED = RING; L_DONE = RING + 16; L_AUXC = RING + 32; L_GO = RING + 36
L_STAT = RING + 64
L_ML = RING + 128
L_RED = RING + 256
REDW = 2176
L_FIN = L_RED + 4 * REDW
LDS_SIZE = L_FIN + 3072
L_TR = 0
LOG2E = 0x3fb8aa3b
SCALE = 0x3db504f3
INV576 = 0x3ae38e39; INV192 = 0x3baaaaab; THIRD = 0x3eaaaaab
STAMP_OFF = 768 << 20
NSTAMP = 16
DPPALL = 'row_mask:0xf bank_mask:0xf'

pX, pK, pV, pWQ, pWO, pBX, pWG, pWU, pWD, pC, pWM, pOUT, pDBG, pWS = [16 + 2 * i for i in range(14)]
F0, F1 = 0, 9
P10, P11 = 9, 13
P20, P21 = 13, 21
D0, D1 = 13, 22
W0, W1 = 22, 31

def merge(A, B, lead):
    out = list(A[:lead]); rest = A[lead:]
    return out, rest

def gen(D=20, D2=32, ramp=116, stamps=False, ntiles=128, wlate=0, p1dbg=0, pause=1, wthr=63):
    a = Asm()
    hdr = open(os.path.join(os.path.dirname(os.path.abspath(__file__)), 'header.txt')).read().rstrip('\n').split('\n')
    a.L += hdr
    a.header([f'; @launch grid=(256,1,1) block=(512,1,1) lds={LDS_SIZE}'])
    a.kstart(KN + '_kernel')

    def srd(d, p, size):
        a(f's_mov_b32 s{d}, s{p}\ns_mov_b32 s{d+1}, s{p+1}\ns_mov_b32 s{d+2}, {size}\ns_mov_b32 s{d+3}, 0x20000')
    def stamp(k):
        if stamps: a(f's_memrealtime s[{64+2*k}:{65+2*k}]\ns_waitcnt lgkmcnt(0)')
    def pstamp(k):
        if p1dbg: stamp(k)
    def tstamp(k):
        if not p1dbg: stamp(k)
    def flush_stamps(ks):
        if not stamps: return
        a(f's_add_u32 s6, s{pWS}, {STAMP_OFF}\ns_addc_u32 s7, s{pWS+1}, 0\ns_lshl_b32 s8, s2, 7\nv_mov_b32 v1, s8\ns_mov_b64 exec, 1')
        for k in ks:
            a(f'v_mov_b32 v2, s{64+2*k}\nv_mov_b32 v3, s{65+2*k}\nglobal_store_dwordx2 v1, v[2:3], s[6:7] offset:{8*k}\ns_nop 1')
        a('s_waitcnt vmcnt(0)')
    def rnd(dst, src, o=None):
        (o or a)(f'v_cvt_pk_bf16_f32 v{dst}, v{src}, v{src}\nv_lshlrev_b32 v{dst}, 16, v{dst}')
    def rnd2(d0, d1, s0, s1, t):
        a(f'v_cvt_pk_bf16_f32 v{t}, v{s0}, v{s1}\nv_lshlrev_b32 v{d0}, 16, v{t}\nv_and_b32 v{d1}, 0xffff0000, v{t}')
    def wait_flags(mask_lo, mask_hi, vt, sleep=4):
        l = a.lab('fl'); e = a.lab('fle')
        a(f'v_lshlrev_b32 v{vt}, 2, v0\ns_mov_b32 s10, {mask_lo}\ns_mov_b32 s11, {mask_hi}')
        a(f'{l}:\nbuffer_load_dword v{vt+1}, v{vt}, s[52:55], 0 offen sc1\ns_waitcnt vmcnt(0)')
        a(f'v_cmp_eq_u32 vcc, 0, v{vt+1}\ns_and_b64 vcc, vcc, s[10:11]\ns_cbranch_scc0 {e}')
        a(f's_sleep {sleep}\ns_sub_u32 s15, s15, 1\ns_cbranch_scc0 {l}\ns_mov_b32 s15, 0\n{e}:')
    def poll(loads, vchk, sleep=0):
        l = a.lab('po'); e = a.lab('poe')
        a(f'{l}:')
        for ins, _ in loads: a(ins)
        first = True
        for i, (_, regs) in enumerate(loads):
            a(f's_waitcnt vmcnt({len(loads)-1-i})')
            regs = list(regs)
            if first:
                if len(regs) >= 3: a(f'v_max3_u32 v{vchk}, v{regs[0]}, v{regs[1]}, v{regs[2]}'); regs = regs[3:]
                elif len(regs) == 2: a(f'v_max_u32 v{vchk}, v{regs[0]}, v{regs[1]}'); regs = []
                else: a(f'v_mov_b32 v{vchk}, v{regs[0]}'); regs = []
                first = False
            while len(regs) >= 2:
                a(f'v_max3_u32 v{vchk}, v{vchk}, v{regs[0]}, v{regs[1]}'); regs = regs[2:]
            if regs: a(f'v_max_u32 v{vchk}, v{vchk}, v{regs[0]}')
        a(f'v_cmp_eq_u32 vcc, -1, v{vchk}\ns_cbranch_vccz {e}')
        if sleep: a(f's_sleep {sleep}')
        a(f's_sub_u32 s15, s15, 1\ns_cbranch_scc0 {l}\ns_mov_b32 s15, 0\n{e}:')
    def lds_spin(vaddr, vt, sdst, cmp_ins, sleep=1):
        l = a.lab('sp')
        a(f's_mov_b32 s58, 0x20000\n{l}:\nds_read_b32 v{vt}, v{vaddr}\ns_waitcnt lgkmcnt(0)\nv_readfirstlane_b32 s{sdst}, v{vt}\n{cmp_ins}\ns_cbranch_scc1 {l}_ok')
        if sleep: a(f's_sleep {sleep}')
        a(f's_sub_u32 s58, s58, 1\ns_cbranch_scc0 {l}\n{l}_ok:')
    def in_range(lo, hi, notlab):
        if lo > 0: a(f's_cmp_lt_u32 s5, {lo}\ns_cbranch_scc1 {notlab}')
        if hi < 32: a(f's_cmp_ge_u32 s5, {hi}\ns_cbranch_scc1 {notlab}')

    a(f'''s_cmp_ge_u32 s2, 256
    s_cbranch_scc1 L_end
    s_load_dwordx16 s[16:31], s[0:1], 0
    s_load_dwordx8 s[32:39], s[0:1], 64
    s_load_dwordx4 s[40:43], s[0:1], 96
    v_lshrrev_b32 v1, 6, v0
    v_and_b32 v0, 63, v0
    s_and_b32 s4, s2, 7
    v_readfirstlane_b32 s3, v1
    s_lshr_b32 s5, s2, 3
    s_mov_b32 s15, 0x8000''')
    if stamps:
        for k in range(NSTAMP): a(f's_mov_b64 s[{64+2*k}:{65+2*k}], 0')
        a('s_memrealtime s[64:65]')
    a('''s_and_b32 s12, s5, 1
    s_lshl_b32 s13, s4, 1
    s_add_u32 s12, s12, s13
    s_bfe_u32 s13, s5, 0x30001
    s_lshr_b32 s14, s5, 4
    s_cmp_ge_u32 s3, 4
    s_cbranch_scc1 L_aux
    s_cmp_lg_u32 s3, 0
    s_cbranch_scc1 L_cons''')

    a('''v_lshrrev_b32 v2, 4, v0
    v_lshlrev_b32 v2, 6, v2
    v_and_b32 v3, 3, v0
    v_lshl_add_u32 v2, v3, 4, v2
    v_bfe_u32 v3, v0, 2, 2
    v_lshl_add_u32 v2, v3, 8, v2
    v_lshlrev_b32 v3, 4, v0
    s_lshl_b32 s6, s13, 4
    s_add_u32 s6, s6, s12
    s_lshl_b32 s6, s6, 1
    s_add_u32 s6, s6, s14
    s_lshl_b32 s6, s6, 20
    s_mov_b32 s7, 0
    s_mov_b32 s8, 0
    s_mov_b32 s9, 0
    s_setprio 2
    s_waitcnt lgkmcnt(0)''')
    srd(44, pK, 0x10000000); srd(48, pV, 0x10000000)
    a(f'v_mov_b32 v4, {L_LANDED}')
    def ld_issue(n):
        if n % 4 == 0:
            a(f's_add_u32 m0, s8, {n*1024}')
            if n % 8 == 0: a('s_mov_b32 s10, s6')
            else: a('s_add_u32 s10, s6, 4096')
        a(f'buffer_load_dwordx4 {"v2" if n < 8 else "v3"}, s[{44 if n < 8 else 48}:{47 if n < 8 else 51}], s10 offen offset:{(n%4)*1024} nt lds')
    def ld_next():
        a(f'''s_add_u32 s6, s6, 8192
        s_add_u32 s7, s7, 1
        s_add_u32 s8, s8, 16384
        s_cmp_eq_u32 s8, {RING}
        s_cselect_b32 s8, 0, s8''')
    def publish(val):
        a(f'v_mov_b32 v7, {val}\ns_mov_b64 exec, 1\nds_max_u32 v4, v7\ns_mov_b64 exec, -1')
    if pause:
        a(f'''s_sub_u32 s11, s2, {P10*8}
        s_cmp_ge_u32 s11, 9
        s_cbranch_scc1 L_ld0
        s_barrier
        v_mov_b32 v5, {L_GO}''')
        lds_spin(5, 6, 56, 's_cmp_ge_u32 s56, 4', sleep=2)
        for n in range(16): ld_issue(n)
        a('s_branch L_ld0b\nL_ld0:')
    for n in range(16): ld_issue(n)
    a('s_barrier\nL_ld0b:')
    ld_next()
    a(f's_mov_b32 s9, {L_DONE+4}\nv_mov_b32 v5, s9\nv_mov_b32 v6, 0')
    def ld_loop(lab, d, lim):
        a(f'''{lab}:
        s_sub_u32 s11, s7, {NS-1}
        s_waitcnt lgkmcnt(0)
        v_readfirstlane_b32 s56, v6
        s_cmp_ge_i32 s56, s11
        s_cbranch_scc1 {lab}_go
        ds_read_b32 v6, v5
        s_waitcnt lgkmcnt(0)
        v_readfirstlane_b32 s56, v6
        s_cmp_ge_i32 s56, s11
        s_cbranch_scc1 {lab}_go
        s_waitcnt vmcnt(0)
        s_lshl_b32 s57, s7, 1''')
        publish('s57')
        lds_spin(5, 6, 56, 's_cmp_ge_i32 s56, s11')
        a(f'{lab}_go:')
        for n in range(16):
            a(f's_waitcnt vmcnt({d-1})')
            ld_issue(n)
            if (n - d + 1) % 8 == 0:
                c = (n - d + 1) // 8
                a(f's_lshl_b32 s57, s7, 1\ns_add_i32 s57, s57, {c}\ns_max_i32 s57, s57, 0')
                publish('s57')
            if n == 13:
                a(f's_add_u32 s9, s9, 4\ns_cmp_eq_u32 s9, {L_DONE+12}\ns_cselect_b32 s9, {L_DONE}, s9\nv_mov_b32 v5, s9\nds_read_b32 v6, v5')
        ld_next()
        a(f's_cmp_lt_u32 s7, {lim}\ns_cbranch_scc1 {lab}')
    if ramp < ntiles and ramp > 1:
        ld_loop('L_ld1', D, ramp); ld_loop('L_ld2', D2, ntiles); dl = D2
    else:
        ld_loop('L_ld1', D, ntiles); dl = D
    k = (dl - 1) // 8
    while k >= 0:
        a(f's_waitcnt vmcnt({8*k})'); publish(2 * ntiles - k)
        k -= 1
    stamp(1)
    a('s_waitcnt lgkmcnt(0)')
    flush_stamps([0, 1])
    a('s_endpgm')

    KR = 16; VR = 48; E = 80; QL = 96; QH = 100; PB = 104; VF = 108; OA = 124
    vS, vM, vL, vT, vT2, vLA, vCN = 4, 5, 6, 7, 8, 9, 10
    a('L_cons:')
    a(f'''s_sub_u32 s9, s3, 1
    v_lshlrev_b32 v{vLA}, 4, v0
    v_mov_b32 v{vCN}, {L_LANDED}
    v_mov_b32 v{vM}, 0xff800000
    v_mov_b32 v{vL}, 0
    s_mov_b32 s60, 0x05040100
    s_mov_b32 s61, 0x07060302''')
    for i in range(32): a(f'v_mov_b32 v{OA+i}, 0')
    a(f'''v_and_b32 v2, 1, v0
    v_lshrrev_b32 v3, 4, v0
    v_lshlrev_b32 v13, 9, v2
    v_lshl_add_u32 v13, v3, 7, v13
    s_lshl_b32 s57, s9, 10
    s_add_u32 s57, s57, {L_FIN}
    v_add_u32 v13, s57, v13
    s_lshl_b32 s57, s9, 4
    s_add_u32 s57, s57, {L_ML}
    v_lshl_add_u32 v14, v2, 3, s57
    v_lshlrev_b32 v2, 8, v2
    v_lshrrev_b32 v3, 2, v0
    v_lshl_add_u32 v2, v3, 4, v2
    s_lshl_b32 s6, s13, 13
    s_lshl_b32 s7, s12, 9
    s_add_u32 s6, s6, s7
    s_add_u32 s6, s6, {Q_OFF}
    s_waitcnt lgkmcnt(0)''')
    srd(48, pWS, WS_SIZE); srd(52, pDBG, 256)
    a('s_barrier')
    a('s_sleep 60')
    wait_flags(0xff, 0, 11, sleep=8)
    poll([(f'buffer_load_dwordx4 v[{QL}:{QL+3}], v2, s[48:51], s6 offen sc1', range(QL, QL+4))], 11, sleep=2)
    a('v_and_b32 v3, 2, v0\nv_cmp_eq_u32 vcc, 0, v3')
    for i in range(4): a(f'v_mov_b32 v{QH+i}, v{QL+i}')
    a('s_mov_b64 exec, vcc')
    for i in range(4): a(f'v_mov_b32 v{QH+i}, 0')
    a('s_not_b64 exec, vcc')
    for i in range(4): a(f'v_mov_b32 v{QL+i}, 0')
    a('s_mov_b64 exec, -1')
    stamp(2)
    a(f'''s_mov_b32 s7, s9
    s_lshl_b32 s8, s9, 14
    s_lshl_b32 s11, s9, 2
    s_add_u32 s11, s11, {L_DONE}
    v_mov_b32 v11, s11
    s_mov_b32 s56, 0
    s_mov_b32 s10, 0x00030003
    s_mov_b32 s11, 0x00030003
    L_ctile:''')
    def wait_landed(c, sleep=1):
        l = a.lab('wl')
        a(f's_lshl_b32 s57, s7, 1\ns_add_u32 s57, s57, {c}\ns_cmp_ge_u32 s56, s57\ns_cbranch_scc1 {l}')
        lds_spin(vCN, vT, 56, 's_cmp_ge_u32 s56, s57', sleep=sleep)
        a(f'{l}:')
    def allred(v, t, op):
        a(f's_nop 1\n{op} v{v}, v{v}, v{v} quad_perm:[2,3,0,1] {DPPALL}\ns_nop 1\n{op} v{v}, v{v}, v{v} row_ror:4 {DPPALL}\ns_nop 1\n{op} v{v}, v{v}, v{v} row_ror:8 {DPPALL}')
        a(f'v_mov_b32 v{t}, v{v}\ns_nop 1\nv_permlane16_swap_b32 v{v}, v{t}\n{op} v{v}, v{v}, v{t}')
        a(f'v_mov_b32 v{t}, v{v}\ns_nop 1\nv_permlane32_swap_b32 v{v}, v{t}\n{op} v{v}, v{v}, v{t}')
    a(f'v_add_u32 v12, s8, v{vLA}')
    wait_landed(1)
    for t in range(8): a(f'ds_read_b128 v[{KR+4*t}:{KR+4*t+3}], v12 offset:{t*1024}')
    for u in range(4):
        a(f's_waitcnt lgkmcnt({7-2*u})')
        a(f'v_mfma_f32_16x16x32_bf16 v[{E+4*u}:{E+4*u+3}], v[{KR+8*u}:{KR+8*u+3}], v[{QL}:{QL+3}], 0')
        a(f's_waitcnt lgkmcnt({6-2*u})')
        a(f'v_mfma_f32_16x16x32_bf16 v[{E+4*u}:{E+4*u+3}], v[{KR+8*u+4}:{KR+8*u+7}], v[{QH}:{QH+3}], v[{E+4*u}:{E+4*u+3}]')
    for u in range(4):
        for k, c in enumerate([u] + [c for c in range(4) if c != u]):
            rot = (4 * (u - c)) % 16
            ctl = 'quad_perm:[0,1,2,3]' if rot == 0 else f'row_ror:{rot}'
            if k == 0: a(f'v_mov_b32 v{vS}, v{E+4*u+c} {ctl} row_mask:0xf bank_mask:{1<<u:#x}')
            else: a(f'v_add_f32 v{vS}, v{E+4*u+c}, v{vS} {ctl} row_mask:0xf bank_mask:{1<<u:#x}')
    rnd(vS, vS)
    a(f'v_mul_f32 v{vS}, {SCALE:#x}, v{vS}')
    rnd(vS, vS)
    a(f'v_cmp_gt_f32 vcc, v{vS}, v{vM}\ns_cbranch_vccnz L_rescale\nL_resc_done:')
    a(f'v_sub_f32 v{vT}, v{vS}, v{vM}\nv_mul_f32 v{vT}, {LOG2E:#x}, v{vT}\nv_exp_f32 v{vT}, v{vT}\ns_nop 0')
    a(f'v_add_f32 v{vL}, v{vL}, v{vT}\ns_nop 0')
    a(f'v_mov_b32 v{vT2}, v{vT} quad_perm:[2,3,2,3] {DPPALL}')
    a(f'v_cvt_pk_bf16_f32 v{PB}, v{vT}, v{vT2}\ns_cmp_lt_u32 s7, {ntiles-3}\ns_nop 0')
    for j in range(1, 4): a(f'v_mov_b32 v{PB+j}, v{PB} row_ror:{16-4*j} {DPPALL}')
    a('s_cbranch_scc1 L_notlast')
    allred(vL, vT, 'v_add_f32')
    assert vL == vM + 1
    a(f'v_mov_b32 v2, v{vM}\nv_mov_b32 v3, v{vL}\ns_mov_b64 exec, 3\nds_write_b64 v14, v[2:3]\ns_mov_b64 exec, -1\nL_notlast:')
    wait_landed(2, sleep=0)
    for t in range(8): a(f'ds_read_b128 v[{VR+4*t}:{VR+4*t+3}], v12 offset:{8192+t*1024}')
    a(f's_add_u32 s57, s7, 1\nv_mov_b32 v{vT}, s57\ns_waitcnt lgkmcnt(0)\nds_write_b32 v11, v{vT}')
    def vfrag(c):
        r = VF + 4 * (c % 4)
        for j in range(4):
            a(f'v_perm_b32 v{r+j}, v{VR+8*j+4+(c>>1)}, v{VR+8*j+(c>>1)}, s{60+(c&1)}')
    def pv(c):
        r = VF + 4 * (c % 4)
        a(f'v_mfma_f32_16x16x32_bf16 v[{OA+4*c}:{OA+4*c+3}], v[{r}:{r+3}], v[{PB}:{PB+3}], v[{OA+4*c}:{OA+4*c+3}]')
    vfrag(0)
    for c in range(8):
        if c < 7: vfrag(c + 1)
        else: a('s_nop 1')
        pv(c)
    a(f'''s_add_u32 s7, s7, 3
    s_add_u32 s8, s8, {3*16384}
    s_cmp_ge_u32 s8, {RING}
    s_cselect_b32 s57, {RING}, 0
    s_sub_u32 s8, s8, s57
    s_cmp_lt_u32 s7, {ntiles}
    s_cbranch_scc1 L_ctile
    s_mov_b64 exec, s[10:11]''')
    for c in range(8): a(f'ds_write_b128 v13, v[{OA+4*c}:{OA+4*c+3}] offset:{c*16}')
    a('s_waitcnt lgkmcnt(0)\ns_barrier')
    stamp(3)
    if stamps:
        a('s_cmp_lg_u32 s3, 1\ns_cbranch_scc1 L_end')
        flush_stamps([2, 3])
    a('s_endpgm')
    a('L_rescale:')
    a(f'v_max_f32 v{vT}, v{vS}, v{vM}')
    allred(vT, vT2, 'v_max_f32')
    a(f'v_sub_f32 v{vT2}, v{vM}, v{vT}\nv_mul_f32 v{vT2}, {LOG2E:#x}, v{vT2}\nv_exp_f32 v{vT2}, v{vT2}\nv_mov_b32 v{vM}, v{vT}')
    a(f'v_mul_f32 v{vL}, v{vL}, v{vT2}')
    for i in range(32): a(f'v_mul_f32 v{OA+i}, v{OA+i}, v{vT2}')
    a('s_branch L_resc_done')

    WA = 16; BF = 176; AC = 212; PRE = 228
    vRW, vRA, vRB = 13, 14, 15
    a('L_aux:')
    a(f'''s_sub_u32 s9, s3, 4
    s_lshr_b32 s62, s9, 1
    s_and_b32 s63, s9, 1
    s_mov_b32 s60, 0x05040100
    s_mov_b32 s61, 0x07060302
    v_lshrrev_b32 v1, 4, v0
    v_and_b32 v2, 15, v0
    v_mov_b32 v3, 0
    v_lshlrev_b32 v4, 2, v0
    v_add_u32 v4, {RING}, v4
    s_cmp_lg_u32 s9, 0
    s_cbranch_scc1 L_aux1
    ds_write_b32 v4, v3
    L_aux1:
    s_mul_i32 s8, s9, {REDW}
    s_add_u32 s8, s8, {L_RED}
    v_mul_u32_u24 v{vRW}, 272, v2
    v_lshl_add_u32 v{vRW}, v1, 6, v{vRW}
    v_add_u32 v{vRW}, s8, v{vRW}
    v_bfe_u32 v5, v0, 2, 3
    v_mul_u32_u24 v{vRA}, 272, v5
    v_and_b32 v5, 1, v0
    v_lshl_add_u32 v{vRA}, v5, 5, v{vRA}
    v_lshlrev_b32 v{vRB}, 5, v5
    v_bfe_u32 v5, v0, 1, 1
    v_lshl_add_u32 v{vRA}, v5, 2, v{vRA}
    v_lshrrev_b32 v5, 5, v0
    v_lshl_add_u32 v{vRA}, v5, 3, v{vRA}
    s_lshl_b32 s8, s9, 6
    s_add_u32 s8, s8, {L_RED}
    v_add_u32 v{vRA}, s8, v{vRA}
    v_mul_u32_u24 v5, 272, v5
    v_add_u32 v{vRB}, v{vRB}, v5
    v_bfe_u32 v5, v0, 1, 2
    v_lshl_add_u32 v{vRB}, v5, 2, v{vRB}
    v_bfe_u32 v5, v0, 3, 2
    v_lshl_add_u32 v{vRB}, v5, 6, v{vRB}
    s_mul_i32 s8, s9, 544
    s_add_u32 s8, s8, {L_RED}
    v_add_u32 v{vRB}, s8, v{vRB}
    s_waitcnt lgkmcnt(0)''')
    srd(48, pWS, WS_SIZE); srd(52, pDBG, 256)

    def wload_groups(rowseq, stride=None, oob5=False):
        out = []; prev = 0
        for n, row in enumerate(rowseq):
            t = ''
            dr = row - prev; prev = row
            if dr == 1: t += 's_add_u32 s6, s6, s7\n'
            elif dr != 0:
                if stride: t += f's_add_i32 s6, s6, {dr*stride}\n'
                else: t += f's_mul_i32 s8, s7, {dr}\ns_add_i32 s6, s6, s8\n'
            if oob5 and n == 32:
                t += 's_cmp_ge_u32 s9, 2\ns_cselect_b32 s46, 0, s46\n'
            t += f'buffer_load_dwordx2 v[{WA+16+2*n}:{WA+17+2*n}], v3, s[44:47], s6 offen nt'
            out.append(t)
        return out
    def wload(rowseq, bar_at=-1, oob5=False, thr=63):
        for n, t in enumerate(wload_groups(rowseq, None, oob5)):
            if n == bar_at: a('s_barrier')
            if n >= min(thr, 60): a(f's_waitcnt vmcnt({min(thr, 60)-1})')
            a(t)
    def wperm(nblk):
        for s in range(nblk):
            a(f's_waitcnt vmcnt({min(63, 8*(nblk-1-s))})')
            r = WA + 16 + 16 * s; f = WA + 16 * s
            for c in range(4):
                for i in range(4):
                    a(f'v_perm_b32 v{f+4*c+i}, v{r+4*i+2+(c>>1)}, v{r+4*i+(c>>1)}, s{60+(c&1)}')
    rows9 = [32 * s + j for s in range(9) for j in range(8)]
    rows5 = rows9[:40]
    def w_setup(kstart_code):
        a(kstart_code)
        a('''s_mul_i32 s8, s8, s7
        s_add_u32 s6, s6, s8
        s_lshl_b32 s8, s7, 3
        v_mul_lo_u32 v3, v1, s8
        v_lshl_add_u32 v3, v2, 3, v3''')
    KH = 's_mul_i32 s8, s63, 288'
    KQ = 's_mul_i32 s8, s9, 160\ns_min_u32 s8, s8, 448'
    def mfmas(n):
        for s in range(n):
            for c in range(4):
                acc = f'v[{AC+4*c}:{AC+4*c+3}]'
                a(f'v_mfma_f32_16x16x32_bf16 {acc}, v[{WA+16*s+4*c}:{WA+16*s+4*c+3}], v[{BF+4*s}:{BF+4*s+3}], {acc if s else 0}')
    def frag5_setup(v, sbase):
        a(f'''v_and_b32 v{v}, 7, v0
        v_lshlrev_b32 v{v}, 4, v{v}
        v_lshl_add_u32 v{v}, v1, 7, v{v}
        s_mul_i32 s8, s9, 2560
        s_min_u32 s8, s8, 7168
        s_add_u32 s{sbase}, s{sbase}, s8
        s_cmp_ge_u32 s9, 2
        s_cselect_b32 s8, 0, 2048
        s_add_u32 s{sbase+1}, s{sbase}, s8''')
    def frag5_poll(v, sbase):
        poll([(f'buffer_load_dwordx4 v[{BF+4*s}:{BF+4*s+3}], v{v}, s[48:51], s{sbase} offen offset:{512*s} sc1', range(BF+4*s, BF+4*s+4)) for s in range(4)] +
             [(f'buffer_load_dwordx4 v[{BF+16}:{BF+19}], v{v}, s[48:51], s{sbase+1} offen sc1', range(BF+16, BF+20))], 6)
    def red_write(src=AC, pad=True):
        if pad: a('s_nop 4')
        a('s_mov_b32 s10, 0x00ff00ff\ns_mov_b32 s11, 0x00ff00ff\ns_mov_b64 exec, s[10:11]')
        for c in range(4): a(f'ds_write_b128 v{vRW}, v[{src+4*c}:{src+4*c+3}] offset:{16*c}')
        a('s_mov_b64 exec, -1\ns_waitcnt lgkmcnt(0)')
    def sync(hwbar):
        if hwbar: a('s_barrier')
        else:
            a(f'v_mov_b32 v10, {L_AUXC}\nv_mov_b32 v11, 1\ns_mov_b64 exec, 1\nds_add_u32 v10, v11\ns_mov_b64 exec, -1')
            lds_spin(10, 11, 8, 's_cmp_ge_u32 s8, 4', sleep=0)
    def red_read(vaddr):
        for k in range(4):
            a(f'ds_read_b32 v{AC+2*k}, v{vaddr} offset:{k*REDW}\nds_read_b32 v{AC+2*k+1}, v{vaddr} offset:{k*REDW+16}')
        a(f's_waitcnt lgkmcnt(4)\nv_add_f32 v{AC}, v{AC}, v{AC+2}\nv_add_f32 v{AC+1}, v{AC+1}, v{AC+3}')
        a(f's_waitcnt lgkmcnt(0)\nv_add_f32 v{AC+4}, v{AC+4}, v{AC+6}\nv_add_f32 v{AC+5}, v{AC+5}, v{AC+7}')
    def ln_scalars(mean, var, o=None):
        o = o or a
        rnd(mean, mean, o); rnd(var, var, o)
        o(f'v_add_f32 v{var}, 0x3727c5ac, v{var}'); rnd(var, var, o)
        o(f'v_sqrt_f32 v{var}, v{var}\ns_nop 0'); rnd(var, var, o)
        o(f'v_rcp_f32 v{var}, v{var}\ns_nop 0')

    a(f'''s_cmp_lt_u32 s5, {P10}
    s_cbranch_scc1 L_nop
    s_cmp_lt_u32 s5, {P11}
    s_cbranch_scc1 L_p1
    s_cmp_lt_u32 s5, {P21}
    s_cbranch_scc1 L_p2
    s_cmp_lt_u32 s5, 28
    s_cbranch_scc1 L_nop''')
    a(f'''v_mov_b32 v8, -1
    v_mov_b32 v9, -1
    v_mov_b32 v10, -1
    v_mov_b32 v11, -1
    v_lshlrev_b32 v3, 4, v0
    s_cmp_lg_u32 s5, 31
    s_cbranch_scc1 L_clrB
    s_lshl_b32 s6, s4, 2
    s_add_u32 s6, s6, s9
    s_lshl_b32 s6, s6, 12
    s_lshl_b32 s7, s4, 2
    s_branch L_clr4
    L_clrB:
    s_sub_u32 s7, s2, 224
    s_lshl_b32 s6, s7, 2
    s_add_u32 s6, s6, s9
    s_mul_i32 s6, s6, 7168
    s_add_u32 s6, s6, {A_SIZE}
    s_lshl_b32 s7, s7, 2
    s_add_u32 s7, s7, 128''')
    for i in range(3): a(f'buffer_store_dwordx4 v[8:11], v3, s[48:51], s6 offen offset:{i*1024} sc1')
    a('s_add_u32 s6, s6, 3072\nL_clr4:')
    for i in range(4): a(f'buffer_store_dwordx4 v[8:11], v3, s[48:51], s6 offen offset:{i*1024} sc1')
    a(f'''s_barrier
    s_waitcnt vmcnt(0)
    v_mov_b32 v10, {L_AUXC}
    v_mov_b32 v11, 1
    s_mov_b64 exec, 1
    ds_add_rtn_u32 v12, v10, v11
    s_waitcnt lgkmcnt(0)
    v_readfirstlane_b32 s8, v12
    s_cmp_lg_u32 s8, 3
    s_cbranch_scc1 L_clr_done
    v_mov_b32 v10, 0
    buffer_store_dword v11, v10, s[52:55], s7 offen sc1
    L_clr_done:
    s_mov_b64 exec, -1
    s_branch L_mid''')
    a('L_nop:\ns_barrier\ns_branch L_mid')

    a(f'''L_p1:
    s_sub_u32 s56, s2, {P10*8}
    s_cmp_ge_u32 s56, 27
    s_cbranch_scc1 L_nop
    s_cmp_ge_u32 s56, 9
    s_cselect_b32 s57, 1, 0
    s_cmp_ge_u32 s56, 18
    s_cselect_b32 s57, 2, s57
    s_mul_i32 s8, s57, 9
    s_sub_u32 s56, s56, s8
    s_lshl_b32 s8, s57, 1
    s_add_u32 s8, s8, s62
    s_lshl_b32 s8, s8, 2
    s_lshr_b32 s8, 0x524310, s8
    s_and_b32 s8, s8, 7
    s_mul_i32 s6, s8, 1152
    s_lshl_b32 s8, s56, 7
    s_add_u32 s6, s6, s8
    s_movk_i32 s7, 6912''')
    pstamp(9)
    srd(44, pC, 9216)
    a('''v_and_b32 v5, 7, v0
    v_mul_u32_u24 v5, 1152, v5
    v_lshl_add_u32 v5, v1, 4, v5
    v_bfe_u32 v6, v0, 3, 1
    v_lshl_add_u32 v5, v6, 6, v5
    s_mul_i32 s8, s63, 576''')
    for rho in range(5): a(f'buffer_load_dwordx4 v[{BF+8*rho}:{BF+8*rho+3}], v5, s[44:47], s8 offen offset:{rho*128}')
    srd(44, pX, 9216)
    XR = PRE
    a(f'''v_lshrrev_b32 v5, 5, v0
    v_lshlrev_b32 v7, 4, v5
    v_mul_u32_u24 v5, 1152, v5
    v_and_b32 v6, 31, v0
    v_lshl_add_u32 v5, v6, 2, v5
    v_and_b32 v6, 3, v0
    v_lshl_add_u32 v7, v6, 2, v7
    v_bfe_u32 v6, v0, 2, 3
    v_mul_u32_u24 v6, 1152, v6
    v_add_u32 v{PRE+10}, v7, v6
    s_mul_i32 s8, s9, 2304''')
    for k in range(9): a(f'buffer_load_dword v{XR+k}, v5, s[44:47], s8 offen offset:{k*128}')
    a(f's_lshl_b32 s59, s56, 7\ns_lshl_b32 s8, s9, 5\ns_add_u32 s59, s59, s8\nbuffer_load_dword v{PRE+9}, v{PRE+10}, s[44:47], s59 offen')
    srd(44, pWM, 576 * 6912)
    w_setup(KH)
    G = wload_groups(rows9, 6912)
    LEAD = 20
    for n in range(LEAD):
        a(G[n])
        if n == 10: a('s_barrier')
    a(f's_waitcnt vmcnt({LEAD})')
    vb = Asm()
    T = WA
    U = AC; V_ = PRE + 12
    for rho in range(5):
        b = BF + 8 * rho
        for i in range(4): vb(f'v_lshlrev_b32 v{T+2*i}, 16, v{b+i}\nv_and_b32 v{T+2*i+1}, 0xffff0000, v{b+i}')
        for i in range(8): vb(f'v_max_f32 v{T+i}, 0xc2ae0000, v{T+i}')
        for i in range(8): vb(f'v_mul_f32 v{T+8+i}, 0xbfb8aa3b, v{T+i}')
        for i in range(8): vb(f'v_exp_f32 v{T+8+i}, v{T+8+i}')
        for i in range(8): vb(f'v_add_f32 v{T+8+i}, 1.0, v{T+8+i}')
        for i in range(8): vb(f'v_rcp_f32 v{U+i}, v{T+8+i}')
        for i in range(8): vb(f'v_mul_f32 v{U+8+i}, v{T+i}, v{U+i}')
        for i in range(8): vb(f'v_fma_f32 v{T+8+i}, -v{U+8+i}, v{T+8+i}, v{T+i}')
        for i in range(8): vb(f'v_fma_f32 v{T+i}, v{T+8+i}, v{U+i}, v{U+8+i}')
        for i in range(4): vb(f'v_cvt_pk_bf16_f32 v{b+i}, v{T+2*i}, v{T+2*i+1}')
        if rho < 4:
            vb('s_nop 0')
            for i in range(4): vb(f'v_mov_b32 v{b+4+i}, v{b+i} row_ror:8 {DPPALL}')
    xs = [T + k for k in range(16)] + [U, U + 1]
    for k in range(9): vb(f'v_lshlrev_b32 v{xs[2*k]}, 16, v{XR+k}\nv_and_b32 v{xs[2*k+1]}, 0xffff0000, v{XR+k}')
    def red32(v, t):
        for r in (1, 2, 4, 8): vb(f's_nop 1\nv_add_f32 v{v}, v{v}, v{v} row_ror:{r} {DPPALL}')
        vb(f'v_mov_b32 v{t}, v{v}\ns_nop 1\nv_permlane16_swap_b32 v{v}, v{t}\nv_add_f32 v{v}, v{v}, v{t}')
    vb(f'v_add_f32 v8, v{xs[0]}, v{xs[1]}')
    for k in range(2, 18): vb(f'v_add_f32 v8, v8, v{xs[k]}')
    red32(8, 10)
    vb(f'v_mul_f32 v8, {INV576:#x}, v8\nv_mov_b32 v9, 0')
    for k in range(18): vb(f'v_sub_f32 v10, v{xs[k]}, v8\nv_fmac_f32 v9, v10, v10')
    red32(9, 10)
    vb(f'v_mul_f32 v9, {INV576:#x}, v9')
    ln_scalars(8, 9, vb)
    rest = G[LEAD:]
    per = -(-len(vb.L) // len(rest))
    for n, g in enumerate(rest):
        if LEAD + n >= 60: a('s_waitcnt vmcnt(59)')
        a(g)
        for line in vb.L[n*per:(n+1)*per]: a(line)
    a(f'''v_mov_b32 v10, {L_GO}
    v_mov_b32 v11, 1
    v_lshrrev_b32 v12, 5, v0
    s_lshl_b32 s8, s9, 4
    s_add_u32 s8, s8, {L_STAT}
    v_lshl_add_u32 v12, v12, 3, s8
    s_mov_b32 s10, 1
    s_mov_b32 s11, 1
    s_mov_b64 exec, s[10:11]
    ds_write_b64 v12, v[8:9]
    s_mov_b64 exec, 1
    ds_add_u32 v10, v11
    s_mov_b64 exec, -1
    v_lshlrev_b32 v5, 2, v0
    buffer_load_dword v6, v5, s[52:55], 0 offen sc1''')
    pstamp(10)
    for s in range(9):
        a(f's_waitcnt vmcnt({min(63, 8*(8-s)+1)})')
        r = WA + 16 + 16 * s; f = WA + 16 * s
        for c in range(4):
            for i in range(4):
                a(f'v_perm_b32 v{f+4*c+i}, v{r+4*i+2+(c>>1)}, v{r+4*i+(c>>1)}, s{60+(c&1)}')
        if s > 0:
            for c in range(4):
                acc = f'v[{AC+4*c}:{AC+4*c+3}]'
                a(f'v_mfma_f32_16x16x32_bf16 {acc}, v[{f-16+4*c}:{f-16+4*c+3}], v[{BF+4*s-4}:{BF+4*s-1}], {acc if s > 1 else 0}')
    for c in range(4):
        acc = f'v[{AC+4*c}:{AC+4*c+3}]'
        a(f'v_mfma_f32_16x16x32_bf16 {acc}, v[{WA+128+4*c}:{WA+128+4*c+3}], v[{BF+32}:{BF+35}], {acc}')
    pstamp(11)
    red_write()
    a('s_waitcnt vmcnt(0)\nv_cmp_eq_u32 vcc, 0, v6\ns_and_b32 s8, vcc_lo, 0xff\ns_cbranch_scc0 L_p1_fl')
    wait_flags(0xff, 0, 5, sleep=2)
    a('L_p1_fl:')
    sync(False)
    pstamp(14)
    a(f'v_bfe_u32 v5, v0, 2, 3\nv_lshlrev_b32 v5, 3, v5\nv_add_u32 v5, {L_STAT}, v5\nds_read_b64 v[8:9], v5')
    red_read(vRA)
    a('s_cmp_lg_u32 s57, 0\ns_cbranch_scc1 L_p1_mod')
    a(f'v_lshlrev_b32 v10, 16, v{PRE+9}\nv_and_b32 v11, 0xffff0000, v{PRE+9}\nv_sub_f32 v10, v10, v8\nv_sub_f32 v11, v11, v8')
    rnd2(10, 11, 10, 11, 12)
    a('v_mul_f32 v10, v10, v9\nv_mul_f32 v11, v11, v9')
    rnd2(10, 11, 10, 11, 12)
    rnd2(AC, AC+1, AC, AC+1, 12); rnd2(AC+4, AC+5, AC+4, AC+5, 12)
    a(f'v_add_f32 v{AC+4}, 1.0, v{AC+4}\nv_add_f32 v{AC+5}, 1.0, v{AC+5}')
    rnd2(AC+4, AC+5, AC+4, AC+5, 12)
    a(f'v_mul_f32 v10, v10, v{AC+4}\nv_mul_f32 v11, v11, v{AC+5}')
    rnd2(10, 11, 10, 11, 12)
    a(f'''v_add_f32 v10, v10, v{AC}
    v_add_f32 v11, v11, v{AC+1}
    v_cvt_pk_bf16_f32 v10, v10, v11
    s_lshl_b32 s6, s56, 10
    s_lshl_b32 s8, s9, 8
    s_add_u32 s6, s6, s8
    s_add_u32 s6, s6, {H_OFF}
    v_lshlrev_b32 v11, 2, v0
    buffer_store_dword v10, v11, s[48:51], s6 offen sc1''')
    stamp(4)
    a('s_branch L_mid')
    a(f'''L_p1_mod:
    s_cmp_eq_u32 s57, 1
    s_cselect_b32 s6, 9216, 0
    s_movk_i32 s7, 27648
    s_cselect_b32 s7, 9216, s7
    s_add_u32 s6, s6, s59
    s_add_u32 s6, s6, {MOD_OFF}
    s_add_u32 s7, s7, s6
    v_cvt_pk_bf16_f32 v10, v{AC}, v{AC+1}
    v_cvt_pk_bf16_f32 v11, v{AC+4}, v{AC+5}
    buffer_store_dword v10, v{PRE+10}, s[48:51], s6 offen sc1
    buffer_store_dword v11, v{PRE+10}, s[48:51], s7 offen sc1
    s_branch L_mid''')

    a(f'''L_p2:
    s_lshl_b32 s6, s4, 10
    s_sub_u32 s8, s5, {P20}
    s_lshl_b32 s8, s8, 7
    s_add_u32 s57, s6, s8
    s_mov_b32 s6, s57
    s_movk_i32 s7, 8192''')
    srd(44, pWQ, 576 * 8192)
    w_setup(KQ)
    wload(rows5, bar_at=12, oob5=True)
    wperm(5)
    wait_flags(0xff, 0, 5, sleep=2)
    a(f's_mov_b32 s6, {H_OFF}')
    frag5_setup(5, 6)
    a(f'''v_lshrrev_b32 v7, 5, v0
    v_lshlrev_b32 v7, 13, v7
    v_and_b32 v8, 31, v0
    v_lshl_add_u32 v7, v8, 2, v7
    s_lshl_b32 s8, s9, 14
    s_add_u32 s57, s57, s8
    s_add_u32 s57, s57, {Q_OFF}''')
    frag5_poll(5, 6)
    stamp(5)
    mfmas(5)
    red_write()
    sync(False)
    red_read(vRB)
    a(f'v_add_f32 v10, v{AC}, v{AC+4}\nv_add_f32 v11, v{AC+1}, v{AC+5}\nv_cvt_pk_bf16_f32 v10, v10, v11\nbuffer_store_dword v10, v7, s[48:51], s57 offen sc1')
    stamp(6)

    a('L_mid:')
    if wlate:
        a(f'v_mov_b32 v10, {L_LANDED}')
        lds_spin(10, 11, 8, f's_cmp_ge_u32 s8, {wlate}', sleep=16)
    a(f'''s_cmp_lt_u32 s5, {F1}
    s_cbranch_scc1 L_midF
    s_cmp_lt_u32 s5, {D0}
    s_cbranch_scc1 L_mid2
    s_cmp_lt_u32 s5, {D1}
    s_cbranch_scc1 L_midD
    s_cmp_ge_u32 s5, {W1}
    s_cbranch_scc1 L_mid2''')
    AD = 112
    srd(44, pWO, 4096 * 1152)
    a(f'''s_lshl_b32 s6, s4, 2
    s_add_u32 s6, s6, s9
    s_mul_i32 s6, s6, 147456
    s_sub_u32 s8, s5, {W0}
    s_lshl_b32 s8, s8, 7
    s_add_u32 s6, s6, s8
    s_movk_i32 s7, 1152
    v_mul_u32_u24 v3, 2304, v1
    v_lshl_add_u32 v3, v2, 3, v3''')
    wload([32 * t + 8 * (j & 3) + (j >> 2) for t in range(4) for j in range(8)], thr=wthr)
    wperm(4)
    a('s_branch L_mid2')
    a('L_midD:')
    srd(44, pWD, 4608 * 1152)
    a(f'''s_mul_i32 s6, s4, {576*1152}
    s_sub_u32 s8, s5, {D0}
    s_lshl_b32 s8, s8, 7
    s_add_u32 s6, s6, s8
    s_movk_i32 s7, 1152''')
    w_setup(KQ)
    wload(rows5, oob5=True, thr=wthr)
    wperm(5)
    a('s_branch L_mid2')
    a(f'''L_midF:
    s_cmp_eq_u32 s62, 0
    s_cselect_b32 s44, s{pWG}, s{pWU}
    s_cselect_b32 s45, s{pWG+1}, s{pWU+1}
    s_mov_b32 s46, {576*9216}
    s_mov_b32 s47, 0x20000
    s_mul_i32 s6, s4, 1152
    s_lshl_b32 s8, s5, 7
    s_add_u32 s6, s6, s8
    s_movk_i32 s7, 9216''')
    w_setup(KH)
    wload(rows9, thr=wthr)
    wperm(9)
    a('L_mid2:')
    wait_flags(0xff, 0x00ffffff, 5, sleep=8)
    in_range(P20, P21, 'L_mid3')
    a(f'''s_sub_u32 s56, s5, {P20}
    s_mul_i32 s6, s56, 1152
    s_mul_i32 s8, s9, 384
    s_add_u32 s6, s6, s8
    v_lshlrev_b32 v5, 3, v0''')
    for i in range(8): a(f'v_mov_b32 v{BF+i}, 0')
    srd(44, pX, 9216)
    a(f'''s_mov_b32 s10, -1
    s_mov_b32 s11, 0xffff
    s_cmp_eq_u32 s9, 3
    s_cbranch_scc1 L_mid3
    s_mov_b64 exec, s[10:11]
    buffer_load_dwordx2 v[{BF}:{BF+1}], v5, s[44:47], s6 offen
    s_add_u32 s6, s6, {MOD_OFF}
    s_add_u32 s7, s6, 9216
    s_add_u32 s8, s6, 18432''')
    poll([(f'buffer_load_dwordx2 v[{BF+2}:{BF+3}], v5, s[48:51], s6 offen sc1', [BF+2, BF+3]),
          (f'buffer_load_dwordx2 v[{BF+4}:{BF+5}], v5, s[48:51], s7 offen sc1', [BF+4, BF+5]),
          (f'buffer_load_dwordx2 v[{BF+6}:{BF+7}], v5, s[48:51], s8 offen sc1', [BF+6, BF+7])], 6, sleep=8)
    a('s_mov_b64 exec, -1')
    for i in range(8): a(f'v_lshlrev_b32 v{PRE+2*i}, 16, v{BF+i}\nv_and_b32 v{PRE+2*i+1}, 0xffff0000, v{BF+i}')
    for i in range(4): a(f'v_add_f32 v{PRE+12+i}, 1.0, v{PRE+12+i}')
    rnd2(PRE+12, PRE+13, PRE+12, PRE+13, 6); rnd2(PRE+14, PRE+15, PRE+14, PRE+15, 6)
    a('L_mid3:')
    def sel_half(v):
        a(f'v_and_b32 v5, 1, v1\nv_cmp_eq_u32 vcc, 1, v5\nv_lshlrev_b32 v5, 16, v{v}\nv_and_b32 v{v}, 0xffff0000, v{v}\nv_cndmask_b32 v{v}, v5, v{v}, vcc')
    a(f'''v_lshlrev_b32 v{PRE+18}, 3, v2
    v_lshl_add_u32 v{PRE+18}, v1, 1, v{PRE+18}
    v_and_b32 v{PRE+17}, 0xfc, v{PRE+18}''')
    srd(44, pOUT, 9216)
    in_range(D0, D1, 'L_mid4')
    a(f'''s_cmp_lg_u32 s9, 3
    s_cbranch_scc1 L_mid4
    s_mul_i32 s6, s4, 1152
    s_sub_u32 s8, s5, {D0}
    s_lshl_b32 s8, s8, 7
    s_add_u32 s59, s6, s8
    s_add_u32 s6, s59, {MOD_OFF + 27648}''')
    poll([(f'buffer_load_dword v{PRE+16}, v{PRE+17}, s[48:51], s6 offen sc1', [PRE+16])], 6, sleep=8)
    sel_half(PRE + 16)
    a('L_mid4:')
    a(f'''v_lshlrev_b32 v{PRE+20}, 4, v0
    v_add_u32 v{PRE+21}, {L_FIN}, v{PRE+20}
    v_lshrrev_b32 v5, 5, v0
    v_lshlrev_b32 v{PRE+22}, 3, v5
    v_add_u32 v{PRE+22}, {L_ML}, v{PRE+22}
    v_lshlrev_b32 v{PRE+23}, 3, v0
    v_lshrrev_b32 v{PRE+24}, 2, v0
    v_mul_u32_u24 v5, 18432, v5
    v_and_b32 v6, 31, v0
    v_lshl_add_u32 v{PRE+25}, v6, 3, v5
    s_lshl_b32 s96, s12, 4
    s_lshl_b32 s8, s14, 3
    s_add_u32 s96, s96, s8
    s_add_u32 s96, s96, s13
    s_mul_i32 s96, s96, 640
    s_add_u32 s96, s96, {OP_OFF}
    s_mul_i32 s97, s9, 5120''')
    stamp(7)
    a('s_barrier')
    a('s_cmp_lg_u32 s9, 0\ns_cbranch_scc1 L_tail')
    for c in range(3): a(f'ds_read_b64 v[{AC+2*c}:{AC+2*c+1}], v{PRE+22} offset:{16*c}')
    for c in range(3): a(f'ds_read_b128 v[{BF+4*c}:{BF+4*c+3}], v{PRE+21} offset:{1024*c}')
    a(f's_waitcnt lgkmcnt(3)\nv_max3_f32 v8, v{AC}, v{AC+2}, v{AC+4}')
    for c in range(3): a(f'v_sub_f32 v{AC+2*c}, v{AC+2*c}, v8')
    for c in range(3): a(f'v_mul_f32 v{AC+2*c}, {LOG2E:#x}, v{AC+2*c}')
    for c in range(3): a(f'v_exp_f32 v{AC+2*c}, v{AC+2*c}')
    a(f's_nop 0\nv_mul_f32 v9, v{AC}, v{AC+1}\nv_fmac_f32 v9, v{AC+2}, v{AC+3}\nv_fmac_f32 v9, v{AC+4}, v{AC+5}\nv_rcp_f32 v10, v9\ns_waitcnt lgkmcnt(0)')
    for i in range(4): a(f'v_mul_f32 v{BF+i}, v{BF+i}, v{AC}')
    for c in (1, 2):
        for i in range(4): a(f'v_fmac_f32 v{BF+i}, v{BF+4*c+i}, v{AC+2*c}')
    for i in range(4): a(f'v_mul_f32 v{BF+i}, v{BF+i}, v10')
    a(f'''v_cvt_pk_bf16_f32 v10, v{BF}, v{BF+1}
    v_cvt_pk_bf16_f32 v11, v{BF+2}, v{BF+3}
    buffer_store_dwordx2 v[10:11], v{PRE+23}, s[48:51], s96 offen sc1
    s_mov_b32 s10, 1
    s_mov_b32 s11, 1
    s_mov_b64 exec, s[10:11]
    buffer_store_dwordx2 v[8:9], v{PRE+24}, s[48:51], s96 offen offset:512 sc1
    s_mov_b64 exec, -1''')
    stamp(8)
    a(f'''L_tail:
    s_cmp_lt_u32 s5, {F1}
    s_cbranch_scc1 L_tF
    s_cmp_lt_u32 s5, {D0}
    s_cbranch_scc1 L_fin
    s_cmp_lt_u32 s5, {P21}
    s_cbranch_scc1 L_tO
    s_cmp_lt_u32 s5, {D1}
    s_cbranch_scc1 L_tD
    s_cmp_ge_u32 s5, {W1}
    s_cbranch_scc1 L_fin''')
    a(f'''s_lshl_b32 s6, s4, 1
    s_add_u32 s6, s6, s62
    s_mul_i32 s6, s6, {16*640}
    s_add_u32 s6, s6, {OP_OFF}
    s_lshl_b32 s8, s63, 3
    s_add_u32 s7, s6, s8
    s_lshl_b32 s8, s63, 8
    s_add_u32 s6, s6, s8
    s_add_u32 s56, s6, 5120
    v_mul_u32_u24 v7, 640, v2
    v_mul_u32_u24 v5, 640, v1
    v_lshl_add_u32 v5, v2, 4, v5
    v_mul_u32_u24 v{AD}, 272, v1
    v_lshl_add_u32 v{AD}, v2, 4, v{AD}
    v_add_u32 v{AD}, s97, v{AD}
    v_mul_u32_u24 v{AD+1}, 272, v2
    v_add_u32 v{AD+2}, s97, v{AD+1}
    v_lshl_add_u32 v{AD+1}, v1, 4, v{AD+2}
    v_mov_b32 v8, 0
    v_mov_b32 v9, 0
    s_mul_i32 s57, s9, 36864
    s_mul_i32 s8, s4, 2304
    s_add_u32 s57, s57, s8
    s_sub_u32 s8, s5, {W0}
    s_lshl_b32 s8, s8, 8
    s_add_u32 s57, s57, s8
    s_add_u32 s57, s57, {Y_OFF}''')
    poll([(f's_mov_b64 exec, 0xffff\nbuffer_load_dwordx2 v[8:9], v7, s[48:51], s7 offen offset:512 sc1\ns_mov_b64 exec, -1', [8, 9])] +
         [(f'buffer_load_dwordx4 v[{BF+4*t}:{BF+4*t+3}], v5, s[48:51], s{6 if t < 2 else 56} offen offset:{2560*(t&1)} sc1', range(BF+4*t, BF+4*t+4)) for t in range(4)], 6)
    tstamp(9)
    for t in range(4): a(f'ds_write_b128 v{AD}, v[{BF+4*t}:{BF+4*t+3}] offset:{1088*t}')
    a(f's_mov_b64 exec, 0xffff\nds_write_b64 v{AD+2}, v[8:9] offset:256\ns_mov_b64 exec, -1\ns_waitcnt lgkmcnt(0)')
    for t in range(4): a(f'ds_read_b128 v[{BF+4*t}:{BF+4*t+3}], v{AD+1} offset:{64*t}')
    a(f'ds_read_b64 v[8:9], v{AD+2} offset:256')
    for t in range(4):
        a(f's_waitcnt lgkmcnt({4-t})')
        for c in range(4):
            acc = f'v[{AC+4*c}:{AC+4*c+3}]'
            a(f'v_mfma_f32_16x16x32_bf16 {acc}, v[{WA+16*t+4*c}:{WA+16*t+4*c+3}], v[{BF+4*t}:{BF+4*t+3}], {acc if t else 0}')
    a(f'''s_waitcnt lgkmcnt(0)
    s_nop 1
    v_max_f32 v10, v8, v8 row_ror:8 {DPPALL}
    v_sub_f32 v8, v8, v10
    v_mul_f32 v8, {LOG2E:#x}, v8
    v_exp_f32 v8, v8
    s_nop 0
    v_mul_f32 v8, v8, v9
    s_nop 1
    v_add_f32 v9, v8, v8 row_ror:8 {DPPALL}
    v_rcp_f32 v9, v9
    s_nop 0
    v_mul_f32 v8, v8, v9''')
    for i in range(16): a(f'v_mul_f32 v{AC+i}, v{AC+i}, v8')
    for i in range(16): a(f'v_add_f32 v{AC+i}, v{AC+i}, v{AC+i} row_ror:8 {DPPALL}')
    red_write(pad=False)
    sync(True)
    red_read(vRB)
    a(f'v_add_f32 v10, v{AC}, v{AC+4}\nv_add_f32 v11, v{AC+1}, v{AC+5}\nbuffer_store_dwordx2 v[10:11], v{PRE+25}, s[48:51], s57 offen sc1')
    tstamp(14)
    a('s_branch L_fin')
    a(f'''L_tO:
    s_cmp_eq_u32 s9, 3
    s_cbranch_scc1 L_tO_bar
    s_sub_u32 s56, s5, {P20}
    s_mul_i32 s6, s56, 18432
    s_mul_i32 s8, s9, 768
    s_add_u32 s6, s6, s8
    s_add_u32 s6, s6, {Y_OFF}
    s_lshl_b32 s8, s9, 3
    s_add_u32 s8, s8, {L_STAT}
    v_mov_b32 v{AD}, s8
    v_mov_b32 v{AD+1}, {L_STAT}
    s_mul_i32 s8, s9, 384
    s_mul_i32 s99, s56, 1152
    s_add_u32 s99, s99, s8
    s_mul_i32 s98, s4, 9216
    s_add_u32 s98, s98, s99
    s_add_u32 s98, s98, {H2_OFF}
    s_add_u32 s99, s99, {X2_OFF}
    v_mov_b32 v8, 0
    v_mov_b32 v9, 0''')
    a('s_mov_b32 s10, -1\ns_mov_b32 s11, 0xffff\ns_mov_b64 exec, s[10:11]')
    poll([(f's_add_u32 s8, s6, {2304*x}\nbuffer_load_dwordx4 v[{BF+4*x}:{BF+4*x+3}], v{PRE+20}, s[48:51], s8 offen sc1', range(BF+4*x, BF+4*x+4)) for x in range(8)], 6)
    tstamp(10)
    for st in (16, 8, 4):
        for i in range(0, st, 2): a(f'v_pk_add_f32 v[{BF+i}:{BF+i+1}], v[{BF+i}:{BF+i+1}], v[{BF+st+i}:{BF+st+i+1}]')
    X = BF
    rnd2(X, X+1, X, X+1, 6); rnd2(X+2, X+3, X+2, X+3, 7)
    for i in range(4): a(f'v_mul_f32 v{X+i}, v{X+i}, v{PRE+4+i}')
    rnd2(X, X+1, X, X+1, 6); rnd2(X+2, X+3, X+2, X+3, 7)
    for i in range(4): a(f'v_add_f32 v{X+i}, v{X+i}, v{PRE+i}')
    rnd2(X, X+1, X, X+1, AD+2); rnd2(X+2, X+3, X+2, X+3, AD+3)
    a(f'v_readfirstlane_b32 s57, v{X}\ns_nop 1')
    for i in range(4): a(f'v_subrev_f32 v{X+4+i}, s57, v{X+i}')
    a(f'v_add_f32 v8, v{X+4}, v{X+5}\nv_mul_f32 v9, v{X+4}, v{X+4}\nv_add_f32 v8, v8, v{X+6}\nv_fmac_f32 v9, v{X+5}, v{X+5}\nv_add_f32 v8, v8, v{X+7}\nv_fmac_f32 v9, v{X+6}, v{X+6}\nv_fmac_f32 v9, v{X+7}, v{X+7}')
    a('s_mov_b64 exec, -1')
    for r in (1, 2, 4, 8): a(f'v_add_f32 v8, v8, v8 row_ror:{r} {DPPALL}\ns_nop 0\nv_add_f32 v9, v9, v9 row_ror:{r} {DPPALL}')
    for sw in (16, 32):
        a(f'v_mov_b32 v10, v8\nv_mov_b32 v11, v9\ns_nop 0\nv_permlane{sw}_swap_b32 v8, v10\nv_permlane{sw}_swap_b32 v9, v11\nv_add_f32 v8, v8, v10\nv_add_f32 v9, v9, v11')
    a(f'''v_mul_f32 v10, {INV192:#x}, v8
    v_fma_f32 v9, -v10, v8, v9
    v_add_f32 v8, s57, v10
    s_mov_b64 exec, 1
    ds_write_b64 v{AD}, v[8:9]
    s_mov_b64 exec, s[10:11]
    s_cmp_lg_u32 s56, s4
    s_cbranch_scc1 L_tO_nx
    buffer_store_dwordx2 v[{AD+2}:{AD+3}], v{PRE+23}, s[48:51], s99 offen sc1
    L_tO_nx:
    s_waitcnt lgkmcnt(0)
    L_tO_bar:
    s_barrier
    s_cmp_eq_u32 s9, 3
    s_cbranch_scc1 L_tD
    ds_read_b128 v[{AC}:{AC+3}], v{AD+1}
    ds_read_b64 v[{AC+4}:{AC+5}], v{AD+1} offset:16
    s_waitcnt lgkmcnt(0)
    v_add_f32 v8, v{AC}, v{AC+2}
    v_add_f32 v9, v{AC+1}, v{AC+3}
    v_add_f32 v8, v8, v{AC+4}
    v_add_f32 v9, v9, v{AC+5}
    v_mul_f32 v8, {THIRD:#x}, v8
    v_sub_f32 v{AC}, v{AC}, v8
    v_sub_f32 v{AC+2}, v{AC+2}, v8
    v_sub_f32 v{AC+4}, v{AC+4}, v8
    v_mul_f32 v10, v{AC}, v{AC}
    v_fmac_f32 v10, v{AC+2}, v{AC+2}
    v_fmac_f32 v10, v{AC+4}, v{AC+4}
    v_mul_f32 v9, {INV576:#x}, v9
    v_fmac_f32 v9, {THIRD:#x}, v10
    v_max_f32 v9, 0, v9''')
    ln_scalars(8, 9)
    for i in range(4): a(f'v_sub_f32 v{X+i}, v{X+i}, v8')
    rnd2(X, X+1, X, X+1, 6); rnd2(X+2, X+3, X+2, X+3, 7)
    for i in range(4): a(f'v_mul_f32 v{X+i}, v{X+i}, v9')
    rnd2(X, X+1, X, X+1, 6); rnd2(X+2, X+3, X+2, X+3, 7)
    for i in range(4): a(f'v_mul_f32 v{X+i}, v{X+i}, v{PRE+12+i}')
    rnd2(X, X+1, X, X+1, 6); rnd2(X+2, X+3, X+2, X+3, 7)
    for i in range(4): a(f'v_add_f32 v{X+i}, v{X+i}, v{PRE+8+i}')
    a(f'''v_cvt_pk_bf16_f32 v6, v{X}, v{X+1}
    v_cvt_pk_bf16_f32 v7, v{X+2}, v{X+3}
    buffer_store_dwordx2 v[6:7], v{PRE+23}, s[48:51], s98 offen sc1
    s_mov_b64 exec, -1''')
    tstamp(11)
    a(f'L_tD:\ns_mul_i32 s6, s4, 9216\ns_add_u32 s6, s6, {HH_OFF}')
    frag5_setup(5, 6)
    a(f'''s_sub_u32 s8, s5, {D0}
    s_lshl_b32 s56, s8, 11
    s_add_u32 s56, s56, {DP_OFF}
    s_mul_i32 s57, s9, 36864
    s_add_u32 s57, s57, s56
    s_lshl_b32 s8, s4, 8
    s_add_u32 s57, s57, s8
    s_mul_i32 s8, s4, 18432
    s_add_u32 s56, s56, s8
    s_cmp_lg_u32 s9, 3
    s_cbranch_scc1 L_tD2
    s_add_u32 s98, s59, {X2_OFF}''')
    poll([(f'buffer_load_dword v{PRE+19}, v{PRE+17}, s[48:51], s98 offen sc1', [PRE+19])], 6)
    a('v_mov_b32 v7, v5')
    sel_half(PRE + 19)
    a('v_mov_b32 v5, v7\nL_tD2:')
    frag5_poll(5, 6)
    tstamp(14)
    mfmas(5)
    red_write()
    sync(True)
    red_read(vRB)
    a(f'v_add_f32 v10, v{AC}, v{AC+4}\nv_add_f32 v11, v{AC+1}, v{AC+5}\nbuffer_store_dwordx2 v[10:11], v{PRE+25}, s[48:51], s57 offen sc1')
    tstamp(9)
    a('s_cmp_lg_u32 s9, 3\ns_cbranch_scc1 L_fin')
    poll([(f'buffer_load_dwordx4 v[{BF+4*t}:{BF+4*t+3}], v{PRE+20}, s[48:51], s56 offen offset:{1024*t} sc1', range(BF+4*t, BF+4*t+4)) for t in range(2)], 6)
    for i in range(4): a(f'v_add_f32 v{BF+i}, v{BF+i}, v{BF+4+i}')
    a(f'''s_nop 0
    v_permlane32_swap_b32 v{BF}, v{BF+2}
    v_permlane32_swap_b32 v{BF+1}, v{BF+3}
    v_add_f32 v{BF}, v{BF}, v{BF+2}
    v_add_f32 v{BF+1}, v{BF+1}, v{BF+3}
    s_nop 1
    v_permlane16_swap_b32 v{BF}, v{BF+1}
    v_add_f32 v8, v{BF}, v{BF+1}''')
    rnd(8, 8)
    a(f'v_mul_f32 v8, v8, v{PRE+16}'); rnd(8, 8)
    a(f'''v_add_f32 v8, v8, v{PRE+19}
    v_cvt_pk_bf16_f32 v8, v8, v8
    buffer_store_short v8, v{PRE+18}, s[44:47], s59 offen''')
    if stamps:
        tstamp(15); flush_stamps([15])
    a('s_endpgm')
    a(f'L_tF:\ns_mul_i32 s6, s4, 9216\ns_mul_i32 s8, s63, 576\ns_add_u32 s6, s6, s8\ns_add_u32 s6, s6, {H2_OFF}')
    for t in range(5):
        a(f'''v_add_u32 v5, {64*t}, v0
        v_min_u32 v5, 287, v5
        v_mul_u32_u24 v6, 1821, v5
        v_lshrrev_b32 v6, 16, v6
        v_mul_u32_u24 v6, 576, v6
        v_lshl_add_u32 v{PRE+t}, v5, 4, v6''')
    a(f'''v_add_u32 v{PRE+5}, s97, v{PRE+20}
    v_and_b32 v5, 7, v0
    v_mul_u32_u24 v5, 576, v5
    v_lshl_add_u32 v5, v1, 4, v5
    v_add_u32 v{PRE+6}, s97, v5
    s_mul_i32 s57, s4, 9216
    s_lshl_b32 s8, s5, 10
    s_add_u32 s57, s57, s8
    s_lshl_b32 s8, s9, 8
    s_add_u32 s57, s57, s8
    s_add_u32 s57, s57, {HH_OFF}
    v_lshlrev_b32 v7, 2, v0''')
    poll([(f'buffer_load_dwordx4 v[{BF+4*t}:{BF+4*t+3}], v{PRE+t}, s[48:51], s6 offen sc1', range(BF+4*t, BF+4*t+4)) for t in range(5)], 6)
    stamp(12)
    for t in range(5): a(f'ds_write_b128 v{PRE+5}, v[{BF+4*t}:{BF+4*t+3}] offset:{1024*t}')
    a('s_waitcnt lgkmcnt(0)')
    for s in range(9): a(f'ds_read_b128 v[{BF+4*s}:{BF+4*s+3}], v{PRE+6} offset:{64*s}')
    for s in range(9):
        a(f's_waitcnt lgkmcnt({8-s})')
        for c in range(4):
            acc = f'v[{AC+4*c}:{AC+4*c+3}]'
            a(f'v_mfma_f32_16x16x32_bf16 {acc}, v[{WA+16*s+4*c}:{WA+16*s+4*c+3}], v[{BF+4*s}:{BF+4*s+3}], {acc if s else 0}')
    red_write()
    sync(True)
    red_read(vRA)
    rnd2(AC, AC+1, AC, AC+1, 12); rnd2(AC+4, AC+5, AC+4, AC+5, 12)
    K1 = 0x3d372713; C2 = 0xc0135761
    for i in range(2): a(f'v_mul_f32 v{10+i}, v{AC+i}, v{AC+i}')
    for i in range(2): a(f'v_mul_f32 v{10+i}, {K1:#x}, v{10+i}')
    for i in range(2): a(f'v_fma_f32 v{10+i}, v{10+i}, v{AC+i}, v{AC+i}')
    for i in range(2): a(f'v_mul_f32 v{10+i}, {C2:#x}, v{10+i}')
    for i in range(2): a(f'v_exp_f32 v{10+i}, v{10+i}')
    for i in range(2): a(f'v_add_f32 v{10+i}, 1.0, v{10+i}')
    for i in range(2): a(f'v_rcp_f32 v{10+i}, v{10+i}')
    for i in range(2): a(f'v_mul_f32 v{10+i}, v{10+i}, v{AC+i}')
    rnd2(10, 11, 10, 11, 12)
    a(f'v_mul_f32 v10, v10, v{AC+4}\nv_mul_f32 v11, v11, v{AC+5}\nv_cvt_pk_bf16_f32 v10, v10, v11\nbuffer_store_dword v10, v7, s[48:51], s57 offen sc1')
    stamp(13)
    a('L_fin:')
    if stamps:
        a('s_cmp_lg_u32 s9, 0\ns_cbranch_scc1 L_end')
        flush_stamps(list(range(4, 15)))
    a('L_end:\ns_endpgm')
    a.kdesc(KN + '_kernel', 256, 102, 256)
    return a.text()

if __name__ == '__main__':
    out = sys.argv[1]
    kw = {}
    for kv in sys.argv[2:]:
        k, v = kv.split('=')
        kw[k] = int(v, 0)
    open(out, 'w').write(gen(**kw))
```
